```python
import torch

def _softmax(x, axis=-1):
    return torch.softmax(x, dim=axis)
def _gelu(x):
    return torch.nn.functional.gelu(x, approximate="tanh")
def _silu(x):
    return torch.nn.functional.silu(x)
def _sigmoid(x):
    return torch.sigmoid(x)
def _layernorm(x, axis=-1, eps=1e-5):
    m = x.mean(dim=axis, keepdim=True)
    v = x.var(dim=axis, keepdim=True, unbiased=False)
    return (x - m) / torch.sqrt(v + eps)
def _scatter_add(tgt, idx, src, axis=0):
    return tgt.clone().index_add_(axis, idx, src)
def _segment_sum(src, seg, n):
    out = torch.zeros((n,) + src.shape[1:], dtype=src.dtype)
    return out.index_add_(0, seg, src)
def _pad(x, pw):
    flat = tuple(v for pair in reversed(pw) for v in pair)
    return torch.nn.functional.pad(x, flat)

kernel_name = 'sequential_preLN__sliding_block_cached__mixer_channel_mlp__decode'

def setup_inputs():

    _w = (lambda a: (lambda t: t.to(torch.bfloat16) if t.is_floating_point() else t)(torch.as_tensor(a)))
    def _A_setup():
        B, Sq, D = 1, 1, 576
        Hq, Hkv, Sk, Dh = 32, 16, 65536, 128
        assert Hq % Hkv == 0, (Hq, Hkv)
        return {
            "x": _w((lambda *s: torch.randn(*s, dtype=torch.bfloat16) * 0.05)(B, Sq, D)),
            "k_cache": _w((lambda *s: torch.randn(*s, dtype=torch.bfloat16) * 3.2)(B, Hkv, Sk, Dh)),
            "v_cache": _w((lambda *s: torch.randn(*s, dtype=torch.bfloat16) * 0.4)(B, Hkv, Sk, Dh)),
            "wq": _w((lambda *s: torch.randn(*s, dtype=torch.bfloat16) * 3.2)(D, Hq * Dh) * (D ** -0.5)),
            "wo": _w((lambda *s: torch.randn(*s, dtype=torch.bfloat16) * 0.4)(Hq * Dh, D) * ((Hq * Dh) ** -0.5)),
        }
    _A_in = _A_setup()

    def _B_setup():
        B, S, D, F = 1, 1, 576, 4608
        return {
            "x": _w((lambda *s: torch.randn(*s, dtype=torch.bfloat16) * 0.05)(B, S, D)),
            "w1": _w((lambda *s: torch.randn(*s, dtype=torch.bfloat16) * 3.2)(D, F) * (D ** -0.5)),
            "b1": _w((lambda *s: torch.randn(*s, dtype=torch.bfloat16) * 3.2)(F)),
            "w2": _w((lambda *s: torch.randn(*s, dtype=torch.bfloat16) * 0.1)(F, D) * (F ** -0.5)),
            "b2": _w((lambda *s: torch.randn(*s, dtype=torch.bfloat16) * 0.1)(D)),
        }
    _B_in = _B_setup()

    return {
        "A_x": _A_in["x"],
        "A_k_cache": _A_in["k_cache"],
        "A_v_cache": _A_in["v_cache"],
        "A_wq": _A_in["wq"],
        "A_wo": _A_in["wo"],
        "B_x": _B_in["x"],
        "B_w1": _B_in["w1"],
        "B_b1": _B_in["b1"],
        "B_w2": _B_in["w2"],
        "B_b2": _B_in["b2"],
    }

def reference(A_x, A_k_cache, A_v_cache, A_wq, A_wo, B_x, B_w1, B_b1, B_w2, B_b2):
    def _A_ref(x, k_cache, v_cache, wq, wo):
        B, Sq, D = x.shape
        Hq, Dh = 32, 128
        Hkv, Sk = k_cache.shape[1], k_cache.shape[2]
        W = min(4096, max(256, Sk // 4))
        rep = Hq // Hkv
        q = (lambda x, *d: x.permute(*d))((x @ wq).reshape(B, Sq, Hq, Dh), 0, 2, 1, 3)
        k = (lambda x, n, axis: torch.repeat_interleave(x, n, dim=axis))(k_cache[:, :, Sk - W:, :], rep, axis=1)
        v = (lambda x, n, axis: torch.repeat_interleave(x, n, dim=axis))(v_cache[:, :, Sk - W:, :], rep, axis=1)
        scores = torch.einsum("bhqd,bhkd->bhqk", q, k) * (Dh ** -0.5)
        p = _softmax(scores, axis=-1)
        o = torch.einsum("bhqk,bhkd->bhqd", p, v)
        return (lambda x, *d: x.permute(*d))(o, 0, 2, 1, 3).reshape(B, Sq, Hq * Dh) @ wo

    def _B_ref(x, w1, b1, w2, b2):
        y = _layernorm(x, axis=-1)
        h = _gelu(torch.einsum("bsd,df->bsf", y, w1) + b1)
        return torch.einsum("bsf,fd->bsd", h, w2) + b2

    x = A_x
    h = x + _A_ref(_layernorm(x, axis=-1), A_k_cache, A_v_cache, A_wq, A_wo)
    h2 = h + _B_ref(_layernorm(h, axis=-1), B_w1, B_b1, B_w2, B_b2)
    return h2
```

```python
import re

_REG = re.compile(r"^(v|s|a)(\d+)$")
_RNG = re.compile(r"^(v|s|a)\[(\d+):(\d+)\]$")

TRANS = ("v_exp_f32", "v_log_f32", "v_rcp_f32", "v_rsq_f32", "v_sqrt_f32", "v_sin_f32", "v_cos_f32",
         "v_rcp_iflag_f32")


def regs_of(tok):
    tok = tok.strip()
    if tok.startswith("-"):
        tok = tok[1:]
    if tok.startswith("|") and tok.endswith("|"):
        tok = tok[1:-1]
    m = _REG.match(tok)
    if m:
        return [(m.group(1), int(m.group(2)))]
    m = _RNG.match(tok)
    if m:
        return [(m.group(1), i) for i in range(int(m.group(2)), int(m.group(3)) + 1)]
    if tok == "vcc":
        return [("vcc", 0), ("vcc", 1)]
    if tok == "vcc_lo":
        return [("vcc", 0)]
    if tok == "vcc_hi":
        return [("vcc", 1)]
    if tok == "exec":
        return [("exec", 0), ("exec", 1)]
    if tok == "exec_lo":
        return [("exec", 0)]
    if tok == "exec_hi":
        return [("exec", 1)]
    if tok == "m0":
        return [("m0", 0)]
    return []


def split_ops(rest):
    parts = []
    depth = 0
    cur = ""
    for ch in rest:
        if ch == "[":
            depth += 1
        elif ch == "]":
            depth -= 1
        if ch == "," and depth == 0:
            parts.append(cur.strip())
            cur = ""
        else:
            cur += ch
    parts.append(cur.strip())
    mods = ""
    if parts:
        last = parts[-1].split(None, 1)
        if len(last) == 2:
            parts[-1] = last[0]
            mods = last[1]
        elif len(last) == 0:
            parts = parts[:-1]
    return parts, mods


class Ins:
    __slots__ = ("text", "mn", "kind", "wr", "rd", "dpp", "mfma_c", "mfma_ab", "passes", "states", "store_data",
                 "trans", "lanesel")


def mfma_passes(mn):
    if "32x32x16" in mn or "32x32x8" in mn:
        return 8
    if "16x16x32" in mn or "16x16x16" in mn:
        return 4
    if "16x16x4_f32" in mn:
        return 8
    raise ValueError("unknown mfma " + mn)


def parse(text):
    t = text.split(";")[0].strip()
    i = Ins()
    i.text = text
    sp = t.split(None, 1)
    mn = sp[0]
    rest = sp[1] if len(sp) > 1 else ""
    ops, mods = split_ops(rest)
    i.mn = mn
    i.wr, i.rd = [], []
    i.dpp = False
    i.mfma_c, i.mfma_ab = [], []
    i.passes = 0
    i.states = 1
    i.store_data = []
    i.trans = False
    i.lanesel = []
    base = mn
    for suf in ("_e32", "_e64", "_dpp", "_sdwa"):
        if base.endswith(suf):
            base = base[: -len(suf)]
    if mn == "s_nop":
        i.kind = "nop"
        i.states = int(ops[0], 0) + 1
        return i
    if mn.startswith("v_mfma"):
        i.kind = "mfma"
        i.wr = regs_of(ops[0])
        i.mfma_ab = regs_of(ops[1]) + regs_of(ops[2])
        i.mfma_c = regs_of(ops[3])
        i.rd = i.mfma_ab + i.mfma_c
        i.passes = mfma_passes(mn)
        return i
    if mn.startswith("v_"):
        i.kind = "valu"
        i.dpp = mn.endswith("_dpp") or any(k in mods for k in ("quad_perm", "row_shr", "row_shl", "row_ror", "row_bcast",
                                                               "row_mirror", "row_half_mirror", "wave_", "row_newbcast"))
        i.trans = base in TRANS
        if base.startswith("v_permlane"):
            i.kind = "perm"
            i.wr = regs_of(ops[0]) + regs_of(ops[1])
            i.rd = list(i.wr)
            return i
        if base in ("v_readlane_b32", "v_readfirstlane_b32"):
            i.kind = "readlane"
            i.wr = regs_of(ops[0])
            i.rd = regs_of(ops[1])
            if base == "v_readlane_b32":
                i.lanesel = regs_of(ops[2])
                i.rd += i.lanesel
            return i
        if base == "v_writelane_b32":
            i.wr = regs_of(ops[0])
            i.rd = regs_of(ops[0]) + regs_of(ops[1])
            i.lanesel = regs_of(ops[2])
            i.rd += i.lanesel
            return i
        if base.startswith("v_cmpx"):
            raise ValueError("no cmpx please")
        nd = 1
        if base in ("v_add_co_u32", "v_sub_co_u32", "v_subrev_co_u32", "v_addc_co_u32", "v_subb_co_u32", "v_div_scale_f32",
                    "v_mad_u64_u32"):
            nd = 2
        for o in ops[:nd]:
            i.wr += regs_of(o)
        for o in ops[nd:]:
            i.rd += regs_of(o)
        if base in ("v_fmac_f32", "v_mac_f32", "v_dot2c_f32_bf16", "v_pk_fmac_f16") or i.dpp:
            i.rd += regs_of(ops[0])
        if base == "v_cndmask_b32" and len(ops) == 3:
            i.rd += regs_of("vcc")
        if base == "v_nop":
            pass
        return i
    if mn.startswith(("buffer_", "global_", "flat_")):
        i.kind = "vmem"
        if "_load" in mn:
            if "lds" in mn or " lds" in (" " + mods):
                for o in ops:
                    i.rd += regs_of(o)
                i.rd += regs_of("m0")
            else:
                i.wr = regs_of(ops[0])
                for o in ops[1:]:
                    i.rd += regs_of(o)
        elif "_store" in mn:
            for o in ops:
                i.rd += regs_of(o)
            d = ops[0] if mn.startswith("buffer_") else ops[1]
            if "x3" in mn or "x4" in mn:
                i.store_data = regs_of(d)
        elif "atomic" in mn:
            for o in ops:
                i.rd += regs_of(o)
            if "sc0" in mods:
                i.wr = regs_of(ops[0])
        else:
            pass
        return i
    if mn.startswith("ds_"):
        i.kind = "ds"
        if mn.startswith(("ds_read", "ds_bpermute", "ds_permute", "ds_swizzle")) or "_rtn" in mn:
            i.wr = regs_of(ops[0])
            for o in ops[1:]:
                i.rd += regs_of(o)
        else:
            for o in ops:
                i.rd += regs_of(o)
        return i
    if mn.startswith("s_"):
        i.kind = "salu"
        if mn.startswith(("s_cbranch", "s_branch", "s_endpgm", "s_barrier", "s_waitcnt", "s_setprio", "s_sleep")):
            i.kind = "sctl"
            return i
        if mn.startswith(("s_cmp", "s_bitcmp")):
            for o in ops:
                i.rd += regs_of(o)
            return i
        if ops:
            i.wr = regs_of(ops[0])
            for o in ops[1:]:
                i.rd += regs_of(o)
        return i
    raise ValueError("cannot parse: " + text)


def is_valu(i):
    return i.kind in ("valu", "perm", "readlane")


class Emitter:
    def __init__(self):
        self.lines = []
        self.hist = []
        self.maxv = 0
        self.maxs = 0
        self.nlabel = 0
        self.npad = 0

    def raw(self, text):
        self.lines.append(text)

    def comment(self, text):
        self.lines.append("    ; " + text)

    def newlabel(self, stem="L"):
        self.nlabel += 1
        return f"{stem}_{self.nlabel}"

    def _need(self, ins):
        need = 0
        dist = 0
        rd = set(ins.rd)
        wr = set(ins.wr)
        for p in reversed(self.hist):
            if dist > 24:
                break
            pw = set(p.wr)
            req = 0
            if is_valu(p):
                vw = {r for r in pw if r[0] in ("v", "a")}
                sw = {r for r in pw if r[0] in ("s", "vcc")}
                if vw & rd:
                    if ins.kind == "valu" and ins.dpp:
                        req = max(req, 2)
                    if ins.kind == "perm":
                        req = max(req, 2)
                    if ins.kind == "readlane":
                        req = max(req, 1)
                    if ins.kind == "mfma":
                        req = max(req, 2)
                    if p.trans and is_valu(ins) and not ins.trans:
                        req = max(req, 1)
                    if p.trans and ins.kind in ("vmem", "ds"):
                        req = max(req, 1)
                    if p.mn.startswith("v_dot") and not (ins.mn == p.mn):
                        req = max(req, 3)
                    if "sdwa" in p.mn or "op_sel" in p.text:
                        req = max(req, 1)
                if sw & rd:
                    if is_valu(ins) or ins.kind == "mfma":
                        req = max(req, 2)
                    if ins.kind == "vmem":
                        req = max(req, 5)
                    if sw & set(ins.lanesel):
                        req = max(req, 4)
                    if ins.kind == "salu":
                        req = max(req, 1)
            if p.kind == "mfma":
                big = {2: 5, 4: 8, 8: 12, 16: 20}[p.passes]
                ovl = {2: 4, 4: 6, 8: 10, 16: 18}[p.passes]
                if ins.kind == "mfma":
                    if pw & set(ins.mfma_ab):
                        req = max(req, big)
                    if pw & set(ins.mfma_c):
                        if p.wr == ins.mfma_c and p.passes == ins.passes:
                            req = max(req, 2 if p.passes == 2 else 0)
                        else:
                            req = max(req, ovl)
                    elif pw & wr:
                        req = max(req, big)
                else:
                    if pw & (rd | wr):
                        req = max(req, big)
                    if is_valu(ins) and (set(p.mfma_c) & wr):
                        req = max(req, {2: 1, 4: 3, 8: 7, 16: 15}[p.passes])
            if p.kind == "vmem" and p.store_data and (set(p.store_data) & wr):
                req = max(req, 2 if is_valu(ins) else 1)
            if p.kind == "salu" and ("m0", 0) in pw and ("m0", 0) in rd:
                req = max(req, 1)
            if req - dist > need:
                need = req - dist
            dist += p.states
        return need

    def __call__(self, text):
        for ln in text.strip().split("\n"):
            ln = ln.strip()
            if not ln:
                continue
            if ln.startswith(";"):
                self.lines.append("    " + ln)
                continue
            ins = parse(ln)
            for r in ins.rd + ins.wr:
                if r[0] == "v":
                    self.maxv = max(self.maxv, r[1] + 1)
                if r[0] == "s":
                    self.maxs = max(self.maxs, r[1] + 1)
            if ins.kind == "sctl" and ins.mn.startswith(("s_cbranch", "s_branch")):
                self.drain(keep_vcc=True)
            n = self._need(ins)
            if n > 0:
                self._nop(n)
            self.lines.append("    " + ln)
            self.hist.append(ins)
            self.hist = self.hist[-40:]

    def _nop(self, n):
        self.npad += n
        while n > 0:
            k = min(n, 8)
            t = f"s_nop {k - 1}"
            self.lines.append("    " + t)
            self.hist.append(parse(t))
            n -= k

    def drain(self, keep_vcc=False):
        need = 0
        dist = 0
        for p in reversed(self.hist):
            req = 0
            if is_valu(p):
                if any(r[0] in ("v", "a") for r in p.wr):
                    req = max(req, 3 if p.mn.startswith("v_dot") else 2)
                if any(r[0] == "s" for r in p.wr):
                    req = max(req, 5)
                if any(r[0] == "vcc" for r in p.wr) and not keep_vcc:
                    req = max(req, 5)
            if p.kind == "mfma":
                req = max(req, {2: 5, 4: 8, 8: 12, 16: 20}[p.passes])
            if p.kind == "vmem" and p.store_data:
                req = max(req, 2)
            if p.kind == "salu" and ("m0", 0) in p.wr:
                req = max(req, 1)
            need = max(need, req - dist)
            dist += p.states
        need -= 1 if keep_vcc else 0
        if need > 0:
            self._nop(need)

    def label(self, name):
        self.lines.append(name + ":")
        fake = parse("v_cmp_eq_u32 vcc, v0, v0")
        fake.rd = []
        fake.states = 0
        self.hist.append(fake)

    def text(self):
        return "\n".join(self.lines) + "\n"
```

```python
import sys
import struct
from emit import Emitter

NAME = "sequential_preLN__sliding_block_cached__mixer_channel_mlp__decode_kernel"


def f2u(x):
    return struct.unpack("<I", struct.pack("<f", x))[0]


WS_QP = 0x10000
WS_ST = 0x20000
WS_OP = 0x40000
WS_AP = 0x80000
WS_UP = 0xA0000
WS_TS = 0x200000

L_QS = 0
L_PV = 6400
L_Q = 14592
L_ZERO = 15104
L_MAX = 15120
L_LS = 15136
L_WT = 15392
L_H = 15648
L_T = 16800
L_END = L_T + 32 * 48

LOG2E = 1.4426950408889634

DEFAULTS = dict(
    ts=False,
    W=4,
    k_first=4,
    v_pre=4,
    v_free=1,
    o_when="early",
    m_when="late",
    cap=60000,
    lds=None,
    prio=True,
    warm=True,
)


class Gen:
    def __init__(self, **kw):
        self.p = dict(DEFAULTS)
        self.p.update(kw)
        self.e = Emitter()
        self.nts = 0
        self.vm = []

    def ts(self, k):
        if self.p["ts"]:
            self.e(f"s_memrealtime s[{64 + 2 * k}:{65 + 2 * k}]")

    def vm_issue(self, tag, text):
        self.e(text)
        self.vm.append(tag)

    def vm_wait(self, tag):
        idx = self.vm.index(tag)
        n = len(self.vm) - idx - 1
        self.e(f"s_waitcnt vmcnt({n})")

    def vm_throttle(self, w):
        self.e(f"s_waitcnt vmcnt({w - 1})")

    def exec_set(self, lo, hi):
        if lo == hi == 0xFFFFFFFF:
            self.e("s_mov_b64 exec, -1")
        else:
            self.e(f"s_mov_b32 exec_lo, {hex(lo)}")
            self.e(f"s_mov_b32 exec_hi, {hex(hi)}")

    def tag_insert(self, r):
        for k in range(4):
            self.e(f"v_bfi_b32 v{r + k}, v9, s{31 + k}, v{r + k}")

    def tag_check(self, regs, acc):
        first = True
        for r in regs:
            for k in range(4):
                if first:
                    self.e(f"v_xor_b32 v{acc}, s{31 + k}, v{r + k}")
                    first = False
                else:
                    self.e(f"v_bitop3_b32 v{acc}, v{r + k}, s{31 + k}, v{acc} bitop3:0xbe")
        self.e(f"v_and_b32 v{acc}, v9, v{acc}")
        self.e(f"v_cmp_ne_u32 vcc, 0, v{acc}")

    def poll(self, loads, regs, acc):
        e = self.e
        lp = e.newlabel("POLL")
        dn = e.newlabel("PDONE")
        e("s_mov_b32 s58, 0")
        e.label(lp)
        for t in loads:
            e(t)
        e("s_waitcnt vmcnt(0)")
        self.tag_check(regs, acc)
        e(f"s_cbranch_vccz {dn}")
        e("s_add_u32 s58, s58, 1")
        e(f"s_cmp_lt_u32 s58, {self.p['cap']}")
        e(f"s_cbranch_scc1 {lp}")
        e.label(dn)
        self.vm = []

    def dpp(self, op, d, a, b, ctrl, rm=0xF, bm=0xF):
        self.e(f"{op}_dpp v{d}, v{a}, v{b} {ctrl} row_mask:{hex(rm)} bank_mask:{hex(bm)}")

    def ln_stats(self, P, t, sm, sr):
        e = self.e
        S1, S2, A, B = t, t + 1, t + 2, t + 3
        for k, r in enumerate(P):
            c1 = "0" if k == 0 else f"v{S1}"
            c2 = "0" if k == 0 else f"v{S2}"
            e(f"v_dot2_f32_bf16 v{S1}, v{r}, s59, {c1}")
            e(f"v_dot2_f32_bf16 v{S2}, v{r}, v{r}, {c2}")
        for ctrl, rm in (("quad_perm:[1,0,3,2]", 0xF), ("quad_perm:[2,3,0,1]", 0xF), ("row_half_mirror", 0xF),
                         ("row_mirror", 0xF), ("row_bcast:15", 0xA), ("row_bcast:31", 0xC)):
            self.dpp("v_add_f32", S1, S1, S1, ctrl, rm)
            self.dpp("v_add_f32", S2, S2, S2, ctrl, rm)
        inv = hex(f2u(1.0 / 576.0))
        e(f"v_mul_f32 v{S1}, {inv}, v{S1}")
        e(f"v_mul_f32 v{S2}, {inv}, v{S2}")
        e(f"v_fma_f32 v{S2}, -v{S1}, v{S1}, v{S2}")
        e(f"v_max_f32 v{S2}, 0, v{S2}")
        e(f"v_cvt_pk_bf16_f32 v{A}, v{S1}, v{S2}")
        e(f"v_and_b32 v{B}, 0xffff0000, v{A}")
        e(f"v_add_f32 v{B}, {hex(f2u(1e-5))}, v{B}")
        e(f"v_lshlrev_b32 v{A}, 16, v{A}")
        e(f"v_cvt_pk_bf16_f32 v{B}, v{B}, v{B}")
        e(f"v_and_b32 v{B}, 0xffff0000, v{B}")
        e(f"v_sqrt_f32 v{B}, v{B}")
        e(f"v_readlane_b32 s{sm}, v{A}, 63")
        e(f"v_cvt_pk_bf16_f32 v{B}, v{B}, v{B}")
        e(f"v_and_b32 v{B}, 0xffff0000, v{B}")
        e(f"v_rcp_f32 v{B}, v{B}")
        e(f"s_mov_b32 s{sm + 1}, s{sm}")
        e(f"v_readlane_b32 s{sr}, v{B}, 63")
        e(f"s_mov_b32 s{sr + 1}, s{sr}")

    def ln_pair(self, src, t, sm, sr):
        e = self.e
        e(f"v_lshlrev_b32 v{t}, 16, v{src}")
        e(f"v_and_b32 v{t + 1}, 0xffff0000, v{src}")
        e(f"v_pk_add_f32 v[{t}:{t + 1}], v[{t}:{t + 1}], s[{sm}:{sm + 1}] neg_lo:[0,1] neg_hi:[0,1]")
        e(f"v_cvt_pk_bf16_f32 v{t + 1}, v{t}, v{t + 1}")
        e(f"v_lshlrev_b32 v{t}, 16, v{t + 1}")
        e(f"v_and_b32 v{t + 1}, 0xffff0000, v{t + 1}")
        e(f"v_pk_mul_f32 v[{t}:{t + 1}], v[{t}:{t + 1}], s[{sr}:{sr + 1}]")

    def ln_pairs(self, srcs, ts_, sm, sr, single_last=False):
        e = self.e
        n = len(srcs)
        for s, t in zip(srcs, ts_):
            e(f"v_lshlrev_b32 v{t}, 16, v{s}")
            e(f"v_and_b32 v{t + 1}, 0xffff0000, v{s}")
        for t in ts_:
            e(f"v_pk_add_f32 v[{t}:{t + 1}], v[{t}:{t + 1}], s[{sm}:{sm + 1}] neg_lo:[0,1] neg_hi:[0,1]")
        for t in ts_:
            e(f"v_cvt_pk_bf16_f32 v{t + 1}, v{t}, v{t + 1}")
        for t in ts_:
            e(f"v_lshlrev_b32 v{t}, 16, v{t + 1}")
            e(f"v_and_b32 v{t + 1}, 0xffff0000, v{t + 1}")
        for t in ts_:
            e(f"v_pk_mul_f32 v[{t}:{t + 1}], v[{t}:{t + 1}], s[{sr}:{sr + 1}]")

    def slab_reduce_publish(self, nk, addr_v, t, st_addr_v, st_base):
        e = self.e
        for k in range(nk):
            e(f"ds_read_b128 v[{t + 4 * k}:{t + 4 * k + 3}], v{addr_v} offset:{L_QS + k * 1280}")
        for k in range(1, nk):
            e(f"s_waitcnt lgkmcnt({nk - 1 - k})")
            e(f"v_pk_add_f32 v[{t}:{t + 1}], v[{t}:{t + 1}], v[{t + 4 * k}:{t + 4 * k + 1}]")
            e(f"v_pk_add_f32 v[{t + 2}:{t + 3}], v[{t + 2}:{t + 3}], v[{t + 4 * k + 2}:{t + 4 * k + 3}]")
        for ctrl in ("quad_perm:[1,0,3,2]", "quad_perm:[2,3,0,1]"):
            for r in range(4):
                self.dpp("v_add_f32", t + r, t + r, t + r, ctrl)
        self.tag_insert(t)
        self.exec_set(0x11111111, 0x11111111)
        e(f"global_store_dwordx4 v{st_addr_v}, v[{t}:{t + 3}], s[{st_base}:{st_base + 1}] sc1")
        self.exec_set(0xFFFFFFFF, 0xFFFFFFFF)

    def red8(self, g, t):
        e = self.e
        for r in range(4):
            self.dpp("v_add_f32", g + r, g + r, g + r, "row_ror:8")
        e(f"v_permlane32_swap_b32 v{g}, v{g + 1}")
        e(f"v_permlane32_swap_b32 v{g + 2}, v{g + 3}")
        e(f"v_add_f32 v{g}, v{g}, v{g + 1}")
        e(f"v_add_f32 v{g + 2}, v{g + 2}, v{g + 3}")
        e(f"v_permlane16_swap_b32 v{g}, v{g + 2}")
        e(f"v_add_f32 v{t}, v{g}, v{g + 2}")

    def finish(self):
        e = self.e
        if self.p["ts"]:
            e("s_branch L_TSOUT")
        else:
            e("s_endpgm")

    def build(self):
        e = self.e
        p = self.p
        KR, VR, RR, GR = 40, 72, 104, 136
        T = 12
        self.ts(0)
        e("s_cmp_ge_u32 s2, 256")
        e("s_cbranch_scc1 L_END")
        e("s_load_dwordx16 s[4:19], s[0:1], 0")
        e("s_load_dwordx8 s[20:27], s[0:1], 64")
        e("s_load_dwordx2 s[28:29], s[0:1], 96")
        e("v_lshrrev_b32 v1, 6, v0")
        e("v_and_b32 v0, 63, v0")
        e("v_readfirstlane_b32 s35, v1")
        e("s_and_b32 s36, s2, 7")
        e("s_lshr_b32 s37, s2, 3")
        e("s_and_b32 s38, s37, 1")
        e("s_lshl_b32 s40, s36, 1")
        e("s_add_u32 s38, s38, s40")
        e("s_lshr_b32 s39, s37, 1")
        e("s_and_b32 s40, s39, 3")
        e("s_lshr_b32 s41, s39, 2")
        e("s_mul_i32 s42, s41, 144")
        e("s_lshl_b32 s43, s35, 4")
        e("s_add_u32 s42, s42, s43")
        e("v_lshrrev_b32 v1, 3, v0")
        e("v_and_b32 v2, 7, v0")
        e("v_lshlrev_b32 v3, 4, v0")
        e("v_lshlrev_b32 v4, 1, v0")
        e("s_lshl_b32 s43, s42, 1")
        e("v_lshl_add_u32 v5, v1, 2, s43")
        e("s_lshl_b32 s43, s42, 13")
        e("s_lshl_b32 s44, s38, 9")
        e("s_add_u32 s43, s43, s44")
        e("s_lshl_b32 s44, s40, 7")
        e("s_add_u32 s43, s43, s44")
        e("v_lshlrev_b32 v6, 14, v1")
        e("v_lshl_add_u32 v6, v2, 4, v6")
        e("v_add_u32 v6, s43, v6")
        e("s_lshl_b32 s43, s38, 24")
        e("s_lshl_b32 s44, s39, 16")
        e("s_add_u32 s43, s43, s44")
        e("s_lshl_b32 s44, s35, 13")
        e("s_add_u32 s43, s43, s44")
        e(f"s_add_u32 s43, s43, {61440 * 256 + 4096}")
        e("v_add_u32 v11, s43, v3")
        e("v_bfe_u32 v7, v0, 2, 2")
        e("v_lshrrev_b32 v8, 4, v0")
        e("v_lshlrev_b32 v10, 8, v7")
        e("v_lshl_add_u32 v10, v8, 6, v10")
        e("v_and_b32 v7, 3, v0")
        e("v_lshl_add_u32 v10, v7, 4, v10")
        e("v_add_u32 v10, s43, v10")
        e("s_waitcnt lgkmcnt(0)")
        XR = RR + 8
        self.vm_issue("x4", f"global_load_dwordx4 v[{XR}:{XR + 3}], v3, s[4:5]")
        self.vm_issue("x1", f"global_load_ushort v{XR + 4}, v4, s[4:5] offset:1024")
        self.vm_issue("xo", f"global_load_dword v{XR + 5}, v5, s[4:5]")
        e("s_add_u32 s44, s10, 8192")
        e("s_addc_u32 s45, s11, 0")
        self.vm_issue("wq0", f"global_load_dwordx4 v[{RR}:{RR + 3}], v6, s[10:11] nt")
        self.vm_issue("wq1", f"global_load_dwordx4 v[{RR + 4}:{RR + 7}], v6, s[44:45] nt")
        e("s_load_dword s30, s[28:29], 0 glc")
        e("s_cmp_eq_u32 s35, 8")
        e("s_cbranch_scc1 L_NOK")
        kv_next = [0]

        def kv_issue(throttle):
            n = kv_next[0]
            kv_next[0] += 1
            if throttle:
                self.vm_throttle(p["W"])
            if n < 8:
                self.vm_issue(f"K{n}", f"global_load_dwordx4 v[{KR + 4 * n}:{KR + 4 * n + 3}], v10, s[6:7] offset:{n * 1024 - 4096} nt")
            else:
                n -= 8
                self.vm_issue(f"V{n}", f"global_load_dwordx4 v[{VR + 4 * n}:{VR + 4 * n + 3}], v11, s[8:9] offset:{n * 1024 - 4096} nt")

        for _ in range(p["k_first"]):
            kv_issue(False)
        e.label("L_NOK")
        e("s_mov_b32 s59, 0x3f803f80")
        e("v_mov_b32 v9, 0xff")
        e("v_mov_b32 v12, 0xffff")
        e("v_mov_b32 v13, 0xffff0000")
        e("v_and_b32 v14, 1, v0")
        e("v_cmp_eq_u32 vcc, 1, v14")
        e("v_cndmask_b32 v14, v12, v13, vcc")
        e("v_bfe_u32 v15, v0, 1, 2")
        e("s_mul_i32 s43, s35, 640")
        e("v_lshrrev_b32 v16, 5, v0")
        e("v_mul_u32_u24 v16, 320, v16")
        e("v_lshl_add_u32 v16, v2, 5, v16")
        e("v_bfe_u32 v17, v0, 4, 1")
        e("v_lshl_add_u32 v16, v17, 4, v16")
        e(f"v_add_u32 v{GR + 31}, s43, v16")
        SLAB = GR + 31
        for r in range(4):
            e(f"v_cmp_eq_u32 vcc, {r}, v15")
            e(f"v_cndmask_b32 v{1 + r}, 0, v14, vcc")
        e("s_cmp_lg_u32 s35, 8")
        e("s_cbranch_scc1 L_NOINIT")
        e("v_mov_b32 v12, 0")
        e("v_mov_b32 v13, 0")
        e("v_lshlrev_b32 v14, 3, v0")
        e(f"ds_write_b64 v14, v[12:13] offset:{L_QS + 18 * 320}")
        e(f"ds_write_b64 v14, v[12:13] offset:{L_QS + 18 * 320 + 128}")
        e(f"ds_write_b64 v14, v[12:13] offset:{L_T}")
        e(f"ds_write_b64 v14, v[12:13] offset:{L_T + 512}")
        e(f"ds_write_b64 v14, v[12:13] offset:{L_T + 1024}")
        e("s_mov_b64 exec, 3")
        e(f"ds_write_b64 v14, v[12:13] offset:{L_ZERO}")
        e("s_mov_b64 exec, 1")
        e("v_mov_b32 v12, 0xff800000")
        e("v_mov_b32 v13, 0xff800000")
        e(f"ds_write_b64 v14, v[12:13] offset:{L_MAX}")
        e("s_mov_b64 exec, -1")
        e("s_waitcnt vmcnt(2)")
        e.label("L_NOINIT")
        self.vm_wait("xo")
        self.ts(1)
        self.ln_stats([XR, XR + 1, XR + 2, XR + 3, XR + 4], T, 46, 48)
        self.ln_pair(XR + 5, T + 4, 46, 48)
        e(f"v_cvt_pk_bf16_f32 v{T + 4}, v{T + 4}, v{T + 4}")
        e(f"v_cvt_pk_bf16_f32 v{T + 5}, v{T + 5}, v{T + 5}")
        for t in range(2):
            for r in range(4):
                e(f"v_and_b32 v{T + 8 + 4 * t + r}, v{T + 4 + t}, v{1 + r}")
        e("s_cmp_lg_u32 s35, 8")
        e("s_cbranch_scc1 L_W0")
        e("s_waitcnt vmcnt(0)")
        e.label("L_W0")
        self.vm_wait("wq1")
        e(f"v_mfma_f32_16x16x32_bf16 v[{T}:{T + 3}], v[{T + 8}:{T + 11}], v[{RR}:{RR + 3}], 0")
        e(f"v_mfma_f32_16x16x32_bf16 v[{T}:{T + 3}], v[{T + 12}:{T + 15}], v[{RR + 4}:{RR + 7}], v[{T}:{T + 3}]")
        e("s_waitcnt lgkmcnt(0)")
        e("s_mul_i32 s31, s30, 0x9e3779b1")
        e("s_lshr_b32 s32, s30, 13")
        e("s_xor_b32 s31, s31, s32")
        e("s_and_b32 s31, s31, 0x7e7e7e7e")
        e("s_or_b32 s31, s31, 0x01010101")
        e("s_add_u32 s31, s31, s30")
        e("s_lshr_b32 s32, s31, 8")
        e("s_lshr_b32 s33, s31, 16")
        e("s_lshr_b32 s34, s31, 24")
        self.exec_set(0x00FF00FF, 0xFF00FF00)
        e(f"ds_write_b128 v{SLAB}, v[{T}:{T + 3}] offset:{L_QS}")
        self.exec_set(0xFFFFFFFF, 0xFFFFFFFF)
        e("s_waitcnt lgkmcnt(0)")
        self.ts(2)
        e("s_barrier")
        e("s_cmp_eq_u32 s35, 8")
        e("s_cbranch_scc1 L_C")
        vm_main = None
        e("v_lshrrev_b32 v12, 2, v0")
        e("v_and_b32 v13, 1, v0")
        e("v_lshlrev_b32 v14, 8, v13")
        e("v_lshl_add_u32 v14, v12, 4, v14")
        e(f"v_add_u32 v14, {L_Q}, v14")
        e(f"v_mov_b32 v15, {L_ZERO}")
        e("v_and_b32 v16, 2, v0")
        e("v_cmp_eq_u32 vcc, 0, v16")
        QA0, QA1, MXA, TGM, LSA = GR + 30, GR + 29, GR + 28, GR + 27, GR + 26
        e(f"v_cndmask_b32 v{QA0}, v15, v14, vcc")
        e(f"v_cndmask_b32 v{QA1}, v14, v15, vcc")
        e(f"v_lshlrev_b32 v{MXA}, 2, v13")
        e("v_cmp_eq_u32 vcc, 1, v13")
        e("v_mov_b32 v16, s31")
        e("v_mov_b32 v17, s33")
        e(f"v_cndmask_b32 v{TGM}, v16, v17, vcc")
        e("v_lshrrev_b32 v16, 4, v0")
        e("v_lshlrev_b32 v16, 2, v16")
        e("v_lshl_add_u32 v16, v13, 7, v16")
        e("s_lshl_b32 s43, s35, 4")
        e(f"v_add_u32 v{LSA}, s43, v16")
        e("v_mov_b32 v12, 0xffff")
        e("v_mov_b32 v13, 0xffff0000")
        e("v_and_b32 v14, 2, v0")
        e("v_cmp_eq_u32 vcc, 2, v14")
        e("v_cndmask_b32 v14, v12, v13, vcc")
        e("v_bfe_u32 v15, v0, 2, 2")
        for r in range(4):
            e(f"v_cmp_eq_u32 vcc, {r}, v15")
            e(f"v_cndmask_b32 v{5 + r}, 0, v14, vcc")
        while kv_next[0] < 8 + p["v_pre"]:
            kv_issue(True)
        for _ in range(p["v_free"]):
            if kv_next[0] < 16:
                kv_issue(False)
        self.vm_wait("K7")
        self.ts(3)
        e("s_barrier")
        self.ts(4)
        BQ0, BQ1 = GR, GR + 4
        e(f"ds_read_b128 v[{BQ0}:{BQ0 + 3}], v{QA0}")
        e(f"ds_read_b128 v[{BQ1}:{BQ1 + 3}], v{QA1}")
        D = T
        e("s_waitcnt lgkmcnt(1)")
        for u in range(4):
            e(f"v_mfma_f32_16x16x32_bf16 v[{D + 4 * u}:{D + 4 * u + 3}], v[{KR + 8 * u}:{KR + 8 * u + 3}], v[{BQ0}:{BQ0 + 3}], 0")
        e("s_waitcnt lgkmcnt(0)")
        for u in range(4):
            e(f"v_mfma_f32_16x16x32_bf16 v[{D + 4 * u}:{D + 4 * u + 3}], v[{KR + 8 * u + 4}:{KR + 8 * u + 7}], v[{BQ1}:{BQ1 + 3}], v[{D + 4 * u}:{D + 4 * u + 3}]")
        S = T + 16
        tt = T + 17
        for u in range(4):
            b = D + 4 * u
            self.dpp("v_add_f32", tt + u, b + (u + 1) % 4, b + u, "row_ror:12")
        for u in range(4):
            b = D + 4 * u
            self.dpp("v_add_f32", tt + u, b + (u + 2) % 4, tt + u, "row_ror:8")
        for u in range(4):
            b = D + 4 * u
            self.dpp("v_add_f32", S, b + (u + 3) % 4, tt + u, "row_ror:4", bm=1 << u)
        e(f"v_cvt_pk_bf16_f32 v{S}, v{S}, v{S}")
        e(f"v_and_b32 v{S}, 0xffff0000, v{S}")
        e(f"v_mul_f32 v{S}, {hex(f2u(128 ** -0.5))}, v{S}")
        e(f"v_cvt_pk_bf16_f32 v{S}, v{S}, v{S}")
        e(f"v_and_b32 v{S}, 0xffff0000, v{S}")
        M = tt
        self.dpp("v_max_f32", M, S, S, "quad_perm:[2,3,0,1]")
        self.dpp("v_max_f32", M, M, M, "row_ror:4")
        self.dpp("v_max_f32", M, M, M, "row_ror:8")
        self.exec_set(0x00030003, 0x00030003)
        e(f"ds_max_f32 v{MXA}, v{M} offset:{L_MAX}")
        self.exec_set(0xFFFFFFFF, 0xFFFFFFFF)
        if kv_next[0] < 16:
            kv_issue(True)
        e("s_waitcnt lgkmcnt(0)")
        e("s_barrier")
        e(f"ds_read_b32 v{M}, v{MXA} offset:{L_MAX}")
        e(f"s_mov_b32 s60, {hex(f2u(LOG2E))}")
        e("s_waitcnt lgkmcnt(0)")
        e(f"v_mul_f32 v{M}, s60, v{M}")
        e(f"v_bfi_b32 v{M}, v9, v{TGM}, v{M}")
        e(f"v_fma_f32 v{S}, v{S}, s60, -v{M}")
        e(f"v_exp_f32 v{S}, v{S}")
        PD = tt + 1
        e(f"v_cvt_pk_bf16_f32 v{PD}, v{S}, v{S}")
        self.dpp("v_add_f32", S, S, S, "quad_perm:[2,3,0,1]")
        self.e(f"v_mov_b32_dpp v{PD + 1}, v{PD} row_ror:4 row_mask:0xf bank_mask:0xf")
        self.dpp("v_add_f32", S, S, S, "row_ror:4")
        self.e(f"v_mov_b32_dpp v{PD + 2}, v{PD} row_ror:8 row_mask:0xf bank_mask:0xf")
        self.dpp("v_add_f32", S, S, S, "row_ror:8")
        self.e(f"v_mov_b32_dpp v{PD + 3}, v{PD} row_ror:12 row_mask:0xf bank_mask:0xf")
        self.exec_set(0x00030003, 0x00030003)
        e(f"ds_write_b32 v{LSA}, v{S} offset:{L_LS}")
        self.exec_set(0xFFFFFFFF, 0xFFFFFFFF)
        if kv_next[0] < 16:
            kv_issue(True)
        e("s_waitcnt lgkmcnt(0)")
        e("s_barrier")
        self.ts(5)
        for i in range(8):
            u, t = i >> 1, i & 1
            for r in range(4):
                k = (r - u) % 4
                self.dpp("v_and_b32", KR + 4 * i + r, PD + k, 5 + r, f"quad_perm:[{2 * t},{2 * t + 1},{2 * t},{2 * t + 1}]")
            if i % 2 == 1 and kv_next[0] < 16:
                kv_issue(True)
        while kv_next[0] < 16:
            kv_issue(True)
        e(f"v_lshlrev_b32 v{T + 4}, 4, v0")
        e("s_lshl_b32 s43, s35, 10")
        e(f"v_add_u32 v{T + 4}, s43, v{T + 4}")
        PVA = T + 4
        e("s_cmp_lt_u32 s37, 18")
        e("s_cbranch_scc1 L_M")
        e("s_cmp_lt_u32 s37, 27")
        e("s_cbranch_scc1 L_O")
        vm_at_roles = list(self.vm)

        def pv():
            for i in range(8):
                self.vm_wait(f"V{i}")
                c = "0" if i == 0 else f"v[{T}:{T + 3}]"
                e(f"v_mfma_f32_16x16x32_bf16 v[{T}:{T + 3}], v[{KR + 4 * i}:{KR + 4 * i + 3}], v[{VR + 4 * i}:{VR + 4 * i + 3}], {c}")
            e(f"ds_write_b128 v{PVA}, v[{T}:{T + 3}] offset:{L_PV}")
            e("s_waitcnt lgkmcnt(0)")
            self.ts(6)
            e("s_barrier")

        self.f_setup()
        pv()
        e("s_cmp_ge_u32 s50, 18")
        e("s_cbranch_scc1 L_FIN")
        e.label("L_F_TAIL")
        self.f_tail(GR, T)
        e.label("L_O")
        self.vm = list(vm_at_roles)
        self.o_role(pv, KR, VR, RR, GR, T, SLAB)
        e.label("L_M")
        self.vm = list(vm_at_roles)
        self.m_setup(T)
        if p["m_when"] == "early":
            self.m_loads(RR, True)
        pv()
        if p["m_when"] == "late":
            self.m_loads(RR, False)
        e.label("L_M_TAIL")
        self.m_tail(KR, VR, RR, GR, T)
        e.label("L_C")
        self.vm = []
        self.c_wave(KR, VR, RR, GR, T)
        e.label("L_FIN")
        if p["ts"]:
            e.label("L_TSOUT")
            e("s_memrealtime s[94:95]")
            e("s_waitcnt lgkmcnt(0)")
            e("s_mul_i32 s43, s2, 9")
            e("s_add_u32 s43, s43, s35")
            e("s_lshl_b32 s43, s43, 7")
            e(f"s_add_u32 s43, s43, {WS_TS}")
            e("v_mov_b32 v1, s43")
            e("s_mov_b64 exec, 1")
            for k in range(16):
                e(f"v_mov_b32 v2, s{64 + 2 * k}")
                e(f"global_store_dword v1, v2, s[28:29] offset:{4 * k}")
            e("s_getreg_b32 s43, hwreg(HW_REG_XCC_ID)")
            e("v_mov_b32 v2, s43")
            e("global_store_dword v1, v2, s[28:29] offset:64")
        e.label("L_END")
        e("s_endpgm")

    def f_setup(self):
        e = self.e
        e("s_mul_i32 s50, s36, 5")
        e("s_add_u32 s50, s50, s37")
        e("s_sub_u32 s50, s50, 27")

    def f_tail(self, GR, T):
        e = self.e
        A = T + 8
        e("v_and_b32 v12, 7, v0")
        e("v_lshlrev_b32 v13, 2, v12")
        e("v_bfe_u32 v14, v0, 4, 1")
        e("v_lshl_add_u32 v13, v14, 1, v13")
        e("v_lshrrev_b32 v14, 5, v0")
        e("v_add_u32 v13, v13, v14")
        e("v_mul_u32_u24 v13, 48, v13")
        e("v_lshrrev_b32 v14, 3, v0")
        e("v_and_b32 v15, 31, v0")
        e("s_lshl_b32 s43, s50, 6")
        e("v_lshl_add_u32 v15, v15, 1, s43")
        e("global_load_ushort v16, v15, s[4:5]")
        e("global_load_ushort v17, v15, s[22:23]")
        lab = e.newlabel("F_NOAP")
        e("s_cmp_lg_u32 s35, 8")
        e(f"s_cbranch_scc1 {lab}")
        e("s_lshr_b32 s43, s50, 1")
        e("s_lshl_b32 s43, s43, 11")
        e("s_and_b32 s44, s50, 1")
        e("s_lshl_b32 s44, s44, 7")
        e("s_add_u32 s43, s43, s44")
        e(f"s_add_u32 s43, s43, {WS_AP}")
        e("v_lshlrev_b32 v18, 8, v14")
        e("v_lshl_add_u32 v18, v12, 4, v18")
        e("v_add_u32 v18, s43, v18")
        self.poll([f"global_load_dwordx4 v[{GR}:{GR + 3}], v18, s[28:29] sc1"], [GR], 19)
        self.red8(GR, 19)
        e(f"ds_write_b32 v13, v19 offset:{L_T + 36}")
        e.label(lab)
        e(f"s_mul_i32 s43, s35, {16 * 2304}")
        e("s_lshl_b32 s44, s50, 7")
        e("s_add_u32 s43, s43, s44")
        e(f"s_add_u32 s43, s43, {WS_UP}")
        e("v_mul_u32_u24 v18, 4608, v14")
        e("v_lshl_add_u32 v18, v12, 4, v18")
        e("v_add_u32 v18, s43, v18")
        e("s_lshl_b32 s43, s35, 2")
        e("v_add_u32 v13, s43, v13")
        self.ts(7)
        self.poll([f"global_load_dwordx4 v[{GR}:{GR + 3}], v18, s[28:29] sc1",
                   f"global_load_dwordx4 v[{GR + 4}:{GR + 7}], v18, s[28:29] offset:2304 sc1"], [GR, GR + 4], 19)
        self.ts(8)
        e(f"v_pk_add_f32 v[{GR}:{GR + 1}], v[{GR}:{GR + 1}], v[{GR + 4}:{GR + 5}]")
        e(f"v_pk_add_f32 v[{GR + 2}:{GR + 3}], v[{GR + 2}:{GR + 3}], v[{GR + 6}:{GR + 7}]")
        self.red8(GR, 19)
        e(f"ds_write_b32 v13, v19 offset:{L_T}")
        e("s_waitcnt lgkmcnt(0)")
        e("s_barrier")
        e("s_cmp_lg_u32 s35, 0")
        e("s_cbranch_scc1 L_FIN")
        e("v_and_b32 v12, 31, v0")
        e("v_mul_u32_u24 v12, 48, v12")
        e(f"ds_read_b128 v[{GR}:{GR + 3}], v12 offset:{L_T}")
        e(f"ds_read_b128 v[{GR + 4}:{GR + 7}], v12 offset:{L_T + 16}")
        e(f"ds_read_b64 v[{GR + 8}:{GR + 9}], v12 offset:{L_T + 32}")
        e("v_lshlrev_b32 v16, 16, v16")
        e("v_lshlrev_b32 v17, 16, v17")
        e("s_waitcnt lgkmcnt(0)")
        e(f"v_pk_add_f32 v[{GR}:{GR + 1}], v[{GR}:{GR + 1}], v[{GR + 4}:{GR + 5}]")
        e(f"v_pk_add_f32 v[{GR + 2}:{GR + 3}], v[{GR + 2}:{GR + 3}], v[{GR + 6}:{GR + 7}]")
        e(f"v_cvt_pk_bf16_f32 v{GR + 9}, v{GR + 9}, v{GR + 9}")
        e(f"v_pk_add_f32 v[{GR}:{GR + 1}], v[{GR}:{GR + 1}], v[{GR + 2}:{GR + 3}]")
        e(f"v_and_b32 v{GR + 9}, 0xffff0000, v{GR + 9}")
        e(f"v_add_f32 v{GR}, v{GR}, v{GR + 1}")
        e(f"v_add_f32 v16, v16, v{GR + 9}")
        e(f"v_add_f32 v{GR}, v{GR}, v{GR + 8}")
        e("v_cvt_pk_bf16_f32 v16, v16, v16")
        e(f"v_cvt_pk_bf16_f32 v{GR}, v{GR}, v{GR}")
        e("v_and_b32 v16, 0xffff0000, v16")
        e(f"v_and_b32 v{GR}, 0xffff0000, v{GR}")
        e(f"v_add_f32 v{GR}, v{GR}, v17")
        e(f"v_cvt_pk_bf16_f32 v{GR}, v{GR}, v{GR}")
        e(f"v_and_b32 v{GR}, 0xffff0000, v{GR}")
        e(f"v_add_f32 v{GR}, v{GR}, v16")
        e(f"v_cvt_pk_bf16_f32 v{GR}, v{GR}, v{GR}")
        self.exec_set(0xFFFFFFFF, 0)
        e(f"global_store_short v15, v{GR}, s[24:25]")
        e("s_cmp_lg_u32 s50, 0")
        e("s_cbranch_scc1 L_FIN")
        e("s_mov_b64 exec, 1")
        e("v_mov_b32 v12, 0")
        e("v_mov_b32 v13, s31")
        e("global_store_dword v12, v13, s[28:29] sc1")
        self.finish()

    def o_role(self, pv, KR, VR, RR, GR, T, SLAB):
        e = self.e
        p = self.p
        e("s_lshr_b32 s43, s35, 2")
        e("s_and_b32 s44, s35, 3")
        e("s_lshl_b32 s45, s36, 9")
        e("s_lshl_b32 s46, s43, 8")
        e("s_add_u32 s45, s45, s46")
        e("s_lshl_b32 s46, s44, 5")
        e("s_add_u32 s45, s45, s46")
        e("s_mul_i32 s45, s45, 1152")
        e("s_sub_u32 s46, s37, 18")
        e("s_lshl_b32 s46, s46, 7")
        e("s_add_u32 s45, s45, s46")
        WA = T + 5
        e("v_lshrrev_b32 v18, 3, v0")
        e("v_mul_u32_u24 v18, 4608, v18")
        e("v_and_b32 v19, 7, v0")
        e("v_lshl_add_u32 v18, v19, 4, v18")
        e(f"v_add_u32 v{WA}, s45, v18")
        e(f"s_add_u32 s52, s12, {128 * 1152}")
        e("s_addc_u32 s53, s13, 0")

        def wo_loads(throttle):
            for v in range(8):
                if throttle:
                    self.vm_throttle(p["W"])
                base = "s[52:53]" if (v & 1) else "s[12:13]"
                off = (2 * (v >> 2) + ((v >> 1) & 1)) * 1152
                self.vm_issue(f"R{v}", f"global_load_dwordx4 v[{RR + 4 * v}:{RR + 4 * v + 3}], v{WA}, {base} offset:{off} nt")

        GA, WTA = T + 6, T + 7
        e("s_lshl_b32 s45, s36, 1")
        e("s_add_u32 s45, s45, s43")
        e("s_lshl_b32 s45, s45, 14")
        e("s_lshl_b32 s46, s44, 8")
        e("s_add_u32 s45, s45, s46")
        e(f"s_add_u32 s45, s45, {WS_OP}")
        e("v_and_b32 v19, 3, v0")
        e("v_lshlrev_b32 v20, 12, v19")
        e("v_lshrrev_b32 v21, 2, v0")
        e("v_lshl_add_u32 v20, v21, 4, v20")
        e(f"v_add_u32 v{GA}, s45, v20")
        e("s_lshl_b32 s45, s43, 7")
        e(f"v_lshl_add_u32 v{WTA}, v19, 5, s45")
        if p["o_when"] == "early":
            wo_loads(True)
        pv()
        if p["o_when"] == "late":
            wo_loads(False)
        W = VR
        e(f"ds_read_b128 v[{W}:{W + 3}], v{WTA} offset:{L_WT}")
        e(f"ds_read_b128 v[{W + 4}:{W + 7}], v{WTA} offset:{L_WT + 16}")
        self.ts(7)
        self.poll([f"global_load_dwordx4 v[{GR + 4 * u}:{GR + 4 * u + 3}], v{GA}, s[28:29] offset:{1024 * u} sc1" for u in range(4)],
                  [GR + 4 * u for u in range(4)], T + 8)
        self.ts(8)
        e("s_waitcnt lgkmcnt(0)")
        A = T + 8
        e(f"v_pk_mul_f32 v[{A}:{A + 1}], v[{GR}:{GR + 1}], v[{W}:{W + 1}]")
        e(f"v_pk_mul_f32 v[{A + 2}:{A + 3}], v[{GR + 2}:{GR + 3}], v[{W}:{W + 1}]")
        for u in range(1, 4):
            g = GR + 4 * u
            e(f"v_pk_fma_f32 v[{A}:{A + 1}], v[{g}:{g + 1}], v[{W + 2 * u}:{W + 2 * u + 1}], v[{A}:{A + 1}]")
            e(f"v_pk_fma_f32 v[{A + 2}:{A + 3}], v[{g + 2}:{g + 3}], v[{W + 2 * u}:{W + 2 * u + 1}], v[{A + 2}:{A + 3}]")
        for ctrl in ("quad_perm:[1,0,3,2]", "quad_perm:[2,3,0,1]"):
            for r in range(4):
                self.dpp("v_add_f32", A + r, A + r, A + r, ctrl)
        for r in range(4):
            e(f"v_cvt_pk_bf16_f32 v{A + r}, v{A + r}, v{A + r}")
        for v in range(8):
            src = A + (v & 3)
            for r in range(4):
                own = (r >> 1) == (v >> 2)
                if own:
                    e(f"v_and_b32 v{KR + 4 * v + r}, v{src}, v{1 + r}")
                else:
                    self.dpp("v_and_b32", KR + 4 * v + r, src, 1 + r, "row_half_mirror")
            if v >= 1:
                k = v - 1
                c = "0" if k == 0 else f"v[{T}:{T + 3}]"
                e(f"v_mfma_f32_16x16x32_bf16 v[{T}:{T + 3}], v[{KR + 4 * k}:{KR + 4 * k + 3}], v[{RR + 4 * k}:{RR + 4 * k + 3}], {c}")
        e(f"v_mfma_f32_16x16x32_bf16 v[{T}:{T + 3}], v[{KR + 28}:{KR + 31}], v[{RR + 28}:{RR + 31}], v[{T}:{T + 3}]")
        self.exec_set(0x00FF00FF, 0xFF00FF00)
        e(f"ds_write_b128 v{SLAB}, v[{T}:{T + 3}] offset:{L_QS}")
        e("s_waitcnt lgkmcnt(0)")
        self.ts(9)
        e("s_barrier")
        self.finish()

    def m_setup(self, T):
        e = self.e
        e("s_mul_i32 s50, s36, 18")
        e("s_add_u32 s50, s50, s37")
        e(f"s_mul_i32 s43, s35, {64 * 9216}")
        e("s_lshl_b32 s44, s50, 6")
        e("s_add_u32 s43, s43, s44")
        e("v_lshrrev_b32 v24, 2, v0")
        e(f"v_mul_u32_u24 v24, {4 * 9216}, v24")
        e("v_and_b32 v25, 3, v0")
        e("v_lshl_add_u32 v24, v25, 4, v24")
        e(f"v_add_u32 v{T + 5}, s43, v24")
        for u in range(1, 4):
            e(f"s_add_u32 s{50 + 2 * u}, s16, {u * 9216}")
            e(f"s_addc_u32 s{51 + 2 * u}, s17, 0")
        e(f"s_mul_i32 s43, s50, {32 * 1152}")
        e("s_lshl_b32 s44, s35, 7")
        e("s_add_u32 s43, s43, s44")
        e("v_lshrrev_b32 v24, 3, v0")
        e("v_mul_u32_u24 v26, 4608, v24")
        e("v_and_b32 v27, 7, v0")
        e("v_lshl_add_u32 v26, v27, 4, v26")
        e(f"v_add_u32 v{T + 6}, s43, v26")
        e("v_sub_u32 v26, 3, v25")
        e("v_and_b32 v27, 4, v0")
        e("v_cmp_eq_u32 vcc, 0, v27")
        e("v_cndmask_b32 v26, v26, v25, vcc")
        e("v_lshl_add_u32 v26, v24, 2, v26")
        e(f"v_mul_u32_u24 v{T + 9}, 48, v26")
        e(f"v_lshl_add_u32 v{T + 9}, v27, 2, v{T + 9}")
        e("s_lshl_b32 s43, s50, 6")
        e(f"v_lshl_add_u32 v{T + 7}, v26, 1, s43")
        e("v_lshrrev_b32 v24, 4, v0")
        e("v_lshlrev_b32 v24, 4, v24")
        e("v_lshl_add_u32 v24, v25, 2, v24")
        e("v_bfe_u32 v26, v0, 2, 2")
        e("v_add_u32 v24, v24, v26")
        e("s_lshl_b32 s43, s35, 7")
        e(f"v_lshl_add_u32 v{T + 8}, v24, 1, s43")

    def m_loads(self, RR, throttle):
        T = 12
        W = self.p["W"]
        self.vm_issue("xc", f"global_load_ushort v{T + 10}, v{T + 8}, s[4:5]")
        self.vm_issue("b1", f"global_load_ushort v{T + 11}, v{T + 7}, s[18:19]")
        for u in range(4):
            if throttle:
                self.vm_throttle(W)
            base = "s[16:17]" if u == 0 else f"s[{50 + 2 * u}:{51 + 2 * u}]"
            self.vm_issue(f"R{u}", f"global_load_dwordx4 v[{RR + 4 * u}:{RR + 4 * u + 3}], v{T + 5}, {base} nt")
        for u in range(4):
            if throttle:
                self.vm_throttle(W)
            self.vm_issue(f"R{4 + u}", f"global_load_dwordx4 v[{RR + 16 + 4 * u}:{RR + 16 + 4 * u + 3}], v{T + 6}, s[20:21] offset:{1152 * u} nt")

    def m_tail(self, KR, VR, RR, GR, T):
        e = self.e
        XC, B1, CA, TA = T + 10, T + 11, T + 8, T + 9
        t = KR
        e("s_lshl_b32 s43, s35, 11")
        e(f"s_add_u32 s43, s43, {WS_AP}")
        e(f"v_bfe_u32 v{t}, v0, 2, 2")
        e(f"v_lshlrev_b32 v{t}, 8, v{t}")
        e(f"v_lshrrev_b32 v{t + 1}, 4, v0")
        e(f"v_lshl_add_u32 v{t}, v{t + 1}, 6, v{t}")
        e(f"v_and_b32 v{t + 2}, 3, v0")
        e(f"v_lshl_add_u32 v{t}, v{t + 2}, 4, v{t}")
        e(f"v_add_u32 v{t}, s43, v{t}")
        GA = t
        HA, H1, HO = t + 3, t + 4, t + 5
        e(f"v_lshlrev_b32 v{HA}, 4, v0")
        e(f"v_lshlrev_b32 v{H1}, 1, v0")
        e(f"v_lshrrev_b32 v{HO}, 2, v0")
        e("s_lshl_b32 s43, s35, 7")
        e(f"v_lshl_add_u32 v{HO}, v{HO}, 3, s43")
        MW = t + 6
        e(f"v_or_b32 v{MW}, v1, v3")
        e(f"v_or_b32 v{MW + 1}, v2, v4")
        TW = t + 8
        e(f"v_lshlrev_b32 v{TW}, 3, v{t + 2}")
        e(f"v_lshrrev_b32 v{TW + 1}, 5, v0")
        e(f"v_lshl_add_u32 v{TW}, v{TW + 1}, 2, v{TW}")
        e(f"v_bfe_u32 v{TW + 1}, v0, 3, 1")
        e(f"v_lshl_add_u32 v{TW}, v{TW + 1}, 1, v{TW}")
        e(f"v_bfe_u32 v{TW + 1}, v0, 4, 1")
        e(f"v_add_u32 v{TW}, v{TW}, v{TW + 1}")
        e(f"v_mul_u32_u24 v{TW}, 48, v{TW}")
        e("s_lshl_b32 s43, s35, 2")
        e(f"v_add_u32 v{TW}, s43, v{TW}")
        T2 = t + 9
        e(f"v_and_b32 v{T2}, 4, v0")
        e(f"v_mul_u32_u24 v{T2 + 1}, 3, v{T2}")
        e(f"v_sub_u32 v{T2}, v{TA}, v{T2 + 1}")
        UA = t + 10
        e("s_mul_i32 s43, s50, 2304")
        e("s_lshl_b32 s44, s35, 8")
        e("s_add_u32 s43, s43, s44")
        e(f"s_add_u32 s43, s43, {WS_UP}")
        e(f"v_and_b32 v{UA}, 7, v0")
        e(f"v_lshlrev_b32 v{UA}, 5, v{UA}")
        e(f"v_bfe_u32 v{UA + 1}, v0, 4, 1")
        e(f"v_lshl_add_u32 v{UA}, v{UA + 1}, 4, v{UA}")
        e(f"v_add_u32 v{UA}, s43, v{UA}")
        e("s_mov_b32 s60, 0xff00ff00")
        e("s_mov_b32 s61, 0xff00ff00")
        e("s_mov_b32 s62, 0xf0f0f0f0")
        e("s_mov_b32 s63, 0xf0f0f0f0")
        self.ts(7)
        self.poll([f"global_load_dwordx4 v[{GR}:{GR + 3}], v{GA}, s[28:29] sc1",
                   f"global_load_dwordx4 v[{GR + 4}:{GR + 7}], v{GA}, s[28:29] offset:1024 sc1"], [GR, GR + 4], t + 12)
        self.ts(8)
        e(f"v_pk_add_f32 v[{GR}:{GR + 1}], v[{GR}:{GR + 1}], v[{GR + 4}:{GR + 5}]")
        e(f"v_pk_add_f32 v[{GR + 2}:{GR + 3}], v[{GR + 2}:{GR + 3}], v[{GR + 6}:{GR + 7}]")
        e(f"v_lshlrev_b32 v{XC}, 16, v{XC}")
        for r in range(4):
            self.dpp("v_add_f32", GR + r, GR + r, GR + r, "row_ror:8")
        R = t + 12
        for r in range(4):
            self.dpp("v_add_f32", R, GR + r, GR + r, "row_ror:4", bm=1 << r)
        e(f"v_cvt_pk_bf16_f32 v{R}, v{R}, v{R}")
        e(f"v_and_b32 v{R}, 0xffff0000, v{R}")
        e(f"v_add_f32 v{R}, v{R}, v{XC}")
        e(f"v_cvt_pk_bf16_f32 v{R}, v{R}, v{R}")
        e(f"ds_write_b16 v{CA}, v{R} offset:{L_H}")
        e("s_waitcnt lgkmcnt(0)")
        e("s_barrier")
        P = GR
        e(f"ds_read_b128 v[{P}:{P + 3}], v{HA} offset:{L_H}")
        e(f"ds_read_u16 v{P + 4}, v{H1} offset:{L_H + 1024}")
        e(f"ds_read_b64 v[{P + 6}:{P + 7}], v{HO} offset:{L_H}")
        e(f"v_lshlrev_b32 v{B1}, 16, v{B1}")
        e("s_waitcnt lgkmcnt(1)")
        self.ln_stats([P, P + 1, P + 2, P + 3, P + 4], t + 12, 46, 48)
        e("s_waitcnt lgkmcnt(0)")
        U = VR
        us = [U + 2 * k for k in range(7)]
        self.ln_pairs([P, P + 1, P + 2, P + 3, P + 4, P + 6, P + 7], us, 46, 48)
        for k in range(4):
            e(f"v_cvt_pk_bf16_f32 v{P + k}, v{us[k]}, v{us[k] + 1}")
        e(f"v_cvt_pk_bf16_f32 v{P + 4}, v{us[4]}, 0")
        e(f"v_cvt_pk_bf16_f32 v{P + 6}, v{us[5]}, v{us[5] + 1}")
        e(f"v_cvt_pk_bf16_f32 v{P + 7}, v{us[6]}, v{us[6] + 1}")
        self.ln_stats([P, P + 1, P + 2, P + 3, P + 4], t + 12, 46, 48)
        self.ln_pairs([P + 6, P + 7], [U, U + 2], 46, 48)
        for u in range(4):
            e(f"v_cvt_pk_bf16_f32 v{U + u}, v{U + u}, v{U + u}")
        AA = U + 4
        for u in range(4):
            for r in range(2):
                e(f"v_and_b32 v{AA + 2 * u + r}, v{U + u}, v{MW + r}")
        X = U + 12
        for u in range(4):
            for a in range(2):
                c = "0" if u == 0 else f"v[{X + 4 * a}:{X + 4 * a + 3}]"
                e(f"v_mfma_f32_16x16x16_bf16 v[{X + 4 * a}:{X + 4 * a + 3}], v[{AA + 2 * u}:{AA + 2 * u + 1}], v[{RR + 4 * u + 2 * a}:{RR + 4 * u + 2 * a + 1}], {c}")
        self.ts(9)
        for j in range(4):
            e(f"v_permlane32_swap_b32 v{X + j}, v{X + 4 + j}")
        for j in range(4):
            e(f"v_cndmask_b32 v{X + j}, v{X + j}, v{X + 4 + j}, s[60:61]")
        e(f"v_permlane16_swap_b32 v{X}, v{X + 1}")
        e(f"v_permlane16_swap_b32 v{X + 2}, v{X + 3}")
        e(f"v_cndmask_b32 v{X}, v{X}, v{X + 1}, s[62:63]")
        e(f"v_cndmask_b32 v{X + 2}, v{X + 2}, v{X + 3}, s[62:63]")
        self.dpp("v_add_f32", X + 4, X, X, "row_ror:8", bm=0x3)
        self.dpp("v_add_f32", X + 4, X + 2, X + 2, "row_ror:8", bm=0xC)
        self.dpp("v_add_f32", X + 4, X + 4, X + 4, "row_ror:4")
        self.exec_set(0xF0F0F0F0, 0xF0F0F0F0)
        e(f"ds_write_b32 v{TW}, v{X + 4} offset:{L_T}")
        self.exec_set(0xFFFFFFFF, 0xFFFFFFFF)
        e("s_waitcnt lgkmcnt(0)")
        e("s_barrier")
        Y = GR
        e(f"ds_read_b128 v[{Y}:{Y + 3}], v{TA} offset:{L_T}")
        e(f"ds_read_b32 v{Y + 4}, v{T2} offset:{L_T + 32}")
        c0 = -2.0 * 0.7978845608028654 * LOG2E
        c1 = c0 * 0.044715
        e(f"v_mov_b32 v{Y + 5}, {hex(f2u(c0))}")
        e("s_waitcnt lgkmcnt(1)")
        e(f"v_pk_add_f32 v[{Y}:{Y + 1}], v[{Y}:{Y + 1}], v[{Y + 2}:{Y + 3}]")
        e("s_waitcnt lgkmcnt(0)")
        e(f"v_add_f32 v{Y}, v{Y}, v{Y + 4}")
        e(f"v_add_f32 v{Y}, v{Y}, v{Y + 1}")
        self.dpp("v_add_f32", Y, Y, Y, "row_half_mirror")
        e(f"v_cvt_pk_bf16_f32 v{Y}, v{Y}, v{Y}")
        e(f"v_and_b32 v{Y}, 0xffff0000, v{Y}")
        e(f"v_add_f32 v{Y}, v{Y}, v{B1}")
        e(f"v_cvt_pk_bf16_f32 v{Y}, v{Y}, v{Y}")
        e(f"v_and_b32 v{Y}, 0xffff0000, v{Y}")
        e(f"v_mul_f32 v{Y + 1}, v{Y}, v{Y}")
        e(f"v_fmac_f32 v{Y + 5}, {hex(f2u(c1))}, v{Y + 1}")
        e(f"v_mul_f32 v{Y + 1}, v{Y}, v{Y + 5}")
        e(f"v_exp_f32 v{Y + 1}, v{Y + 1}")
        e(f"v_add_f32 v{Y + 1}, 1.0, v{Y + 1}")
        e(f"v_rcp_f32 v{Y + 1}, v{Y + 1}")
        e(f"v_mul_f32 v{Y}, v{Y}, v{Y + 1}")
        e(f"v_cvt_pk_bf16_f32 v{Y}, v{Y}, v{Y}")
        A2 = VR
        Z = GR + 8
        for u in range(4):
            for r in range(4):
                q = u if r < 2 else 3 - u
                self.dpp("v_and_b32", A2 + 4 * u + r, Y, 1 + r, f"quad_perm:[{q},{q},{q},{q}]")
            if u >= 1:
                k = u - 1
                c = "0" if k == 0 else f"v[{Z}:{Z + 3}]"
                e(f"v_mfma_f32_16x16x32_bf16 v[{Z}:{Z + 3}], v[{A2 + 4 * k}:{A2 + 4 * k + 3}], v[{RR + 16 + 4 * k}:{RR + 16 + 4 * k + 3}], {c}")
        e(f"v_mfma_f32_16x16x32_bf16 v[{Z}:{Z + 3}], v[{A2 + 12}:{A2 + 15}], v[{RR + 28}:{RR + 31}], v[{Z}:{Z + 3}]")
        for r in range(4):
            e(f"v_permlane32_swap_b32 v{Z + r}, v{Z + 4 + r}")
        for r in range(4):
            self.dpp("v_add_f32", Z + r, Z + 4 + r, Z + r, "row_ror:8")
        self.tag_insert(Z)
        self.exec_set(0x00FF00FF, 0)
        e(f"global_store_dwordx4 v{UA}, v[{Z}:{Z + 3}], s[28:29] sc1")
        self.ts(10)
        self.finish()

    def c_wave(self, KR, VR, RR, GR, T):
        e = self.e
        p = self.p
        if p["prio"]:
            e("s_setprio 3")
        t = KR
        RA, SA = VR, VR + 1
        e(f"v_and_b32 v{RA}, 3, v0")
        e(f"v_mul_u32_u24 v{RA}, 320, v{RA}")
        e(f"v_lshrrev_b32 v{SA}, 2, v0")
        e(f"v_lshl_add_u32 v{RA}, v{SA}, 4, v{RA}")
        e(f"v_lshlrev_b32 v{VR + 2}, 4, v{SA}")
        e("s_lshl_b32 s43, s38, 12")
        e(f"s_add_u32 s43, s43, {WS_QP}")
        e("s_lshl_b32 s44, s39, 8")
        e("s_add_u32 s44, s44, s43")
        e(f"v_add_u32 v{SA}, s44, v{VR + 2}")
        self.slab_reduce_publish(5, RA, t, SA, 28)
        self.ts(3)
        L16 = VR + 3
        e(f"v_lshlrev_b32 v{L16}, 4, v0")
        e(f"v_add_u32 v{VR + 4}, s43, v{L16}")
        e(f"v_lshlrev_b32 v{VR + 5}, 3, v0")
        self.poll([f"global_load_dwordx4 v[{GR + 4 * u}:{GR + 4 * u + 3}], v{VR + 4}, s[28:29] offset:{1024 * u} sc1" for u in range(4)],
                  [GR + 4 * u for u in range(4)], t)
        for u in range(1, 4):
            e(f"v_pk_add_f32 v[{GR}:{GR + 1}], v[{GR}:{GR + 1}], v[{GR + 4 * u}:{GR + 4 * u + 1}]")
            e(f"v_pk_add_f32 v[{GR + 2}:{GR + 3}], v[{GR + 2}:{GR + 3}], v[{GR + 4 * u + 2}:{GR + 4 * u + 3}]")
        e(f"v_cvt_pk_bf16_f32 v{GR}, v{GR}, v{GR + 1}")
        e(f"v_cvt_pk_bf16_f32 v{GR + 1}, v{GR + 2}, v{GR + 3}")
        e(f"ds_write_b64 v{VR + 5}, v[{GR}:{GR + 1}] offset:{L_Q}")
        e("s_waitcnt lgkmcnt(0)")
        self.ts(4)
        e("s_barrier")
        if p["warm"]:
            e("s_getpc_b64 s[44:45]")
            e.label("L_PC")
            e(f"s_sub_u32 s44, s44, L_PC-{NAME}")
            e("s_subb_u32 s45, s45, 0")
            e("s_lshl_b32 s43, s37, 10")
            e(f"s_min_u32 s43, s43, L_CODE_END-{NAME}-1024")
            e(f"v_add_u32 v{t}, s43, v{L16}")
            e(f"global_load_dwordx4 v[{GR + 16}:{GR + 19}], v{t}, s[44:45]")
        OPA = VR + 6
        e("s_lshl_b32 s43, s38, 4")
        e("s_add_u32 s43, s43, s39")
        e("s_lshl_b32 s44, s43, 10")
        e(f"s_add_u32 s44, s44, {WS_OP}")
        e(f"v_and_b32 v{OPA}, 15, v0")
        e(f"v_lshlrev_b32 v{OPA}, 6, v{OPA}")
        e(f"v_lshrrev_b32 v{OPA + 1}, 4, v0")
        e(f"v_lshl_add_u32 v{OPA}, v{OPA + 1}, 4, v{OPA}")
        e(f"v_add_u32 v{OPA}, s44, v{OPA}")
        e("s_lshl_b32 s44, s43, 4")
        e(f"s_add_u32 s44, s44, {WS_ST}")
        STA = VR + 7
        e(f"v_mov_b32 v{STA}, s44")
        e(f"v_and_b32 v{VR + 8}, 1, v0")
        e(f"v_lshlrev_b32 v{VR + 8}, 2, v{VR + 8}")
        e(f"v_lshlrev_b32 v{VR + 9}, 2, v0")
        e(f"s_mov_b32 s60, {hex(f2u(LOG2E))}")
        e("s_barrier")
        e(f"ds_read_b32 v{t}, v{VR + 8} offset:{L_MAX}")
        e("s_waitcnt lgkmcnt(0)")
        e(f"v_mul_f32 v{t}, s60, v{t}")
        e(f"v_readlane_b32 s46, v{t}, 0")
        e(f"v_readlane_b32 s47, v{t}, 1")
        e("s_barrier")
        e(f"ds_read_b32 v{t}, v{VR + 9} offset:{L_LS}")
        e("s_waitcnt lgkmcnt(0)")
        for ctrl, rm in (("quad_perm:[1,0,3,2]", 0xF), ("quad_perm:[2,3,0,1]", 0xF), ("row_half_mirror", 0xF),
                         ("row_mirror", 0xF), ("row_bcast:15", 0xA)):
            self.dpp("v_add_f32", t, t, t, ctrl, rm)
        e(f"v_readlane_b32 s48, v{t}, 31")
        e(f"v_readlane_b32 s49, v{t}, 63")
        e(f"v_mov_b32 v{t + 8}, s46")
        e(f"v_mov_b32 v{t + 10}, s47")
        e(f"v_mov_b32 v{t + 9}, s48")
        e(f"v_mov_b32 v{t + 11}, s49")
        self.tag_insert(t + 8)
        e("s_mov_b64 exec, 1")
        e(f"global_store_dwordx4 v{STA}, v[{t + 8}:{t + 11}], s[28:29] sc1")
        e("s_mov_b64 exec, -1")
        self.ts(5)

        def op_publish():
            e("s_barrier")
            self.ts(6)
            for k in range(8):
                e(f"ds_read_b128 v[{t + 4 * k}:{t + 4 * k + 3}], v{L16} offset:{L_PV + 1024 * k}")
            for k in range(1, 8):
                e(f"s_waitcnt lgkmcnt({7 - k})")
                e(f"v_pk_add_f32 v[{t}:{t + 1}], v[{t}:{t + 1}], v[{t + 4 * k}:{t + 4 * k + 1}]")
                e(f"v_pk_add_f32 v[{t + 2}:{t + 3}], v[{t + 2}:{t + 3}], v[{t + 4 * k + 2}:{t + 4 * k + 3}]")
            self.tag_insert(t)
            e(f"global_store_dwordx4 v{OPA}, v[{t}:{t + 3}], s[28:29] sc1")
            self.ts(11)

        e("s_cmp_lt_u32 s37, 18")
        e("s_cbranch_scc1 L_CM")
        e("s_cmp_lt_u32 s37, 27")
        e("s_cbranch_scc1 L_CO")
        self.f_setup()
        op_publish()
        e("s_cmp_ge_u32 s50, 18")
        e("s_cbranch_scc1 L_FIN")
        e("s_branch L_F_TAIL")
        e.label("L_CM")
        self.m_setup(T)
        if p["m_when"] == "early":
            self.m_loads(RR, False)
        op_publish()
        if p["m_when"] == "late":
            self.m_loads(RR, False)
        e("s_branch L_M_TAIL")
        e.label("L_CO")
        e("s_lshl_b32 s43, s36, 9")
        e(f"s_add_u32 s43, s43, {WS_ST}")
        e(f"v_and_b32 v{t}, 31, v0")
        e(f"v_lshlrev_b32 v{t + 1}, 3, v{t}")
        e(f"v_lshlrev_b32 v{t}, 4, v{t}")
        e(f"v_add_u32 v{t}, s43, v{t}")
        e("s_sub_u32 s43, s37, 18")
        e("s_lshl_b32 s43, s43, 11")
        e("s_lshl_b32 s44, s36, 8")
        e("s_add_u32 s43, s43, s44")
        e(f"s_add_u32 s43, s43, {WS_AP}")
        e(f"v_add_u32 v{SA}, s43, v{VR + 2}")
        G = GR
        self.poll([f"global_load_dwordx4 v[{G}:{G + 3}], v{t}, s[28:29] sc1"], [G], t + 2)
        m0, m1 = t + 2, t + 3
        rows = ("quad_perm:[1,0,3,2]", "quad_perm:[2,3,0,1]", "row_half_mirror", "row_mirror")
        for n, ctrl in enumerate(rows):
            self.dpp("v_max_f32", m0, G if n == 0 else m0, G if n == 0 else m0, ctrl)
            self.dpp("v_max_f32", m1, G + 2 if n == 0 else m1, G + 2 if n == 0 else m1, ctrl)
        e(f"v_sub_f32 v{m0}, v{G}, v{m0}")
        e(f"v_sub_f32 v{m1}, v{G + 2}, v{m1}")
        e(f"v_exp_f32 v{m0}, v{m0}")
        e(f"v_exp_f32 v{m1}, v{m1}")
        l0, l1 = t + 4, t + 5
        e(f"v_mul_f32 v{l0}, v{m0}, v{G + 1}")
        e(f"v_mul_f32 v{l1}, v{m1}, v{G + 3}")
        for ctrl in rows:
            self.dpp("v_add_f32", l0, l0, l0, ctrl)
            self.dpp("v_add_f32", l1, l1, l1, ctrl)
        e(f"v_rcp_f32 v{l0}, v{l0}")
        e(f"v_rcp_f32 v{l1}, v{l1}")
        e(f"v_mul_f32 v{m0}, v{m0}, v{l0}")
        e(f"v_mul_f32 v{m1}, v{m1}, v{l1}")
        e(f"ds_write_b64 v{t + 1}, v[{m0}:{m1}] offset:{L_WT}")
        e("s_waitcnt lgkmcnt(0)")
        self.ts(7)
        op_publish()
        e("s_barrier")
        self.ts(9)
        self.slab_reduce_publish(4, RA, t, SA, 28)
        self.ts(10)
        self.finish()

    def text(self):
        self.build()
        e = self.e
        nv = (e.maxv + 7) // 8 * 8
        lds = self.p["lds"] or L_END
        hdr = open("sequential_preLN__sliding_block_cached__mixer_channel_mlp__decode.s.ref").read().split("\n")
        head = [h for h in hdr if h.startswith(";") and not h.startswith("; @launch")]
        out = head + [f"; @launch grid=(256,1,1) block=(576,1,1) lds={lds}"]
        out += ['.amdgcn_target "amdgcn-amd-amdhsa--gfx950"', ".text", f".globl {NAME}", ".p2align 8",
                f".type {NAME},@function", f"{NAME}:"]
        out.append(e.text().rstrip("\n"))
        out += [".p2align 10", "L_CODE_END:"]
        out += ['.section .rodata,"a"', ".p2align 6", f".amdhsa_kernel {NAME}",
                f"  .amdhsa_next_free_vgpr {nv}", "  .amdhsa_next_free_sgpr 102", f"  .amdhsa_accum_offset {nv}",
                "  .amdhsa_group_segment_fixed_size 0", "  .amdhsa_kernarg_size 104", "  .amdhsa_user_sgpr_count 2",
                "  .amdhsa_user_sgpr_kernarg_segment_ptr 1", "  .amdhsa_system_sgpr_workgroup_id_x 1",
                ".end_amdhsa_kernel"]
        return "\n".join(out) + "\n"


def gen(**kw):
    return Gen(**kw).text()


if __name__ == "__main__":
    kw = {}
    outp = "sequential_preLN__sliding_block_cached__mixer_channel_mlp__decode.s"
    for a in sys.argv[1:]:
        k, v = a.split("=")
        if k == "out":
            outp = v
            continue
        try:
            v = eval(v)
        except Exception:
            pass
        kw[k] = v
    g = Gen(**kw)
    open(outp, "w").write(g.text())
    print("vgprs", g.e.maxv, "sgprs", g.e.maxs, "pad", g.e.npad, "lines", len(g.e.lines))
```
